```python
import torch

def _softmax(x, axis=-1):
    return torch.softmax(x, dim=axis)
def _gelu(x):
    return torch.nn.functional.gelu(x, approximate="tanh")
def _silu(x):
    return torch.nn.functional.silu(x)
def _sigmoid(x):
    return torch.sigmoid(x)
def _layernorm(x, axis=-1, eps=1e-5):
    m = x.mean(dim=axis, keepdim=True)
    v = x.var(dim=axis, keepdim=True, unbiased=False)
    return (x - m) / torch.sqrt(v + eps)
def _scatter_add(tgt, idx, src, axis=0):
    return tgt.clone().index_add_(axis, idx, src)
def _segment_sum(src, seg, n):
    out = torch.zeros((n,) + src.shape[1:], dtype=src.dtype)
    return out.index_add_(0, seg, src)
def _pad(x, pw):
    flat = tuple(v for pair in reversed(pw) for v in pair)
    return torch.nn.functional.pad(x, flat)

kernel_name = 'standalone__mha_softmax__near_ridge'

def setup_inputs():

    _w = (lambda a: (lambda t: t.to(torch.bfloat16) if t.is_floating_point() else t)(torch.as_tensor(a)))
    B, H, Sq, Sk, D = 8, 16, 384, 1024, 256
    return {
        "q": _w((lambda *s: torch.randn(*s, dtype=torch.bfloat16) * 0.8)(B, H, Sq, D)),
        "k": _w((lambda *s: torch.randn(*s, dtype=torch.bfloat16) * 0.8)(B, H, Sk, D)),
        "v": _w((lambda *s: torch.randn(*s, dtype=torch.bfloat16) * 0.05)(B, H, Sk, D)),
    }

def reference(q, k, v):
    scale = q.shape[-1] ** -0.5
    scores = torch.einsum("bhqd,bhkd->bhqk", q, k) * scale
    p = _softmax(scores, axis=-1)
    return torch.einsum("bhqk,bhkd->bhqd", p, v)
```

```python
import sys
import math

NAME = "standalone__mha_softmax__near_ridge"

PDK = 3
PDV = 3
THR = 65536.0

V_TID, V_LANE = 0, 1
V_T0 = 2
V_Q = 16
V_S = 112
V_P = 160
V_E = 184
V_LS = 200
V_ONES = 212
V_M = 216
V_L = 219
V_KA = 222
V_VA = 226
V_DK = 234
V_DV = 238
V_E2 = 242
V_X = 250
A_O = 0
A_K = 192
A_V = 224

S_Q, S_K, S_V, S_O = 4, 8, 12, 16
S_W = 20
S_C = 21
S_THR = 22
S_WB = 23
S_KOFF = 24
S_VOFF = 25
S_CNT = 26
S_T0 = 28
S_RA = 40
S_RET = 44

LDS_K = 0
LDS_V = 65536
SLOT = 16384


def vq(b, n=4):
    return "v[%d:%d]" % (b, b + n - 1)


def aq(b, n=4):
    return "a[%d:%d]" % (b, b + n - 1)


def R(kind, b, n):
    return ["%s%d" % (kind, b + i) for i in range(n)]


class Inst:
    __slots__ = ("text", "kind", "rd", "wr", "cost", "c_rd")

    def __init__(self, text, kind, rd=(), wr=(), cost=4, c_rd=()):
        self.text, self.kind, self.rd, self.wr = text, kind, list(rd), list(wr)
        self.cost = cost
        self.c_rd = list(c_rd)


def mfma(D, A, B, C):
    def q(x):
        return ("v" if x[0] == "v" else "a") + "[%d:%d]" % (x[1], x[1] + 3)
    ctext = "0" if C == 0 else q(C)
    rd = R(A[0], A[1], 4) + R(B[0], B[1], 4)
    c_rd = [] if C == 0 else R(C[0], C[1], 4)
    return Inst("v_mfma_f32_16x16x32_bf16 %s, %s, %s, %s" % (q(D), q(A), q(B), ctext),
                "mfma", rd + c_rd, R(D[0], D[1], 4), 8, c_rd)


def valu(text, rd, wr, trans=False):
    return Inst(text, "trans" if trans else "valu", rd, wr, 8 if trans else 4)


def v_fma_s(d, s, sreg, m):
    return valu("v_fma_f32 v%d, v%d, s%d, -v%d" % (d, s, sreg, m), ["v%d" % s, "v%d" % m], ["v%d" % d])


def v_exp(d, s):
    return valu("v_exp_f32 v%d, v%d" % (d, s), ["v%d" % s], ["v%d" % d], trans=True)


def v_cvtpk(d, a, b):
    return valu("v_cvt_pk_bf16_f32 v%d, v%d, v%d" % (d, a, b), ["v%d" % a, "v%d" % b], ["v%d" % d])


def ds_rd128(dst_a, addr_v, off):
    return Inst("ds_read_b128 %s, v%d offset:%d" % (aq(dst_a), addr_v, off), "ds",
                ["v%d" % addr_v], R("a", dst_a, 4))


def ds_rdtr(dst_a, addr_v, off):
    return Inst("ds_read_b64_tr_b16 %s, v%d offset:%d" % (aq(dst_a, 2), addr_v, off), "ds",
                ["v%d" % addr_v], R("a", dst_a, 2))


def salu(text, rd=(), wr=()):
    return Inst(text, "salu", rd, wr, 4)


def other(text, kind="other", rd=(), wr=()):
    return Inst(text, kind, rd, wr, 4)


class Em:
    def __init__(self):
        self.out = []
        self.lds_q = []

    def add(self, ins):
        if isinstance(ins, list):
            for x in ins:
                self.add(x)
            return
        need = -1
        touched = set(ins.rd) | set(ins.wr)
        for i, dst in enumerate(self.lds_q):
            if touched & dst:
                need = i
        if need >= 0:
            n = len(self.lds_q) - 1 - need
            self.out.append(Inst("s_waitcnt lgkmcnt(%d)" % n, "wait"))
            self.lds_q = self.lds_q[need + 1:]
        self.out.append(ins)
        if ins.kind == "ds":
            self.lds_q.append(set(ins.wr))

    def raw(self, text, kind="other"):
        self.out.append(Inst(text, kind))

    def label(self, name):
        self.out.append(Inst(name + ":", "label", cost=0))

    def flush_lds(self):
        if self.lds_q:
            self.out.append(Inst("s_waitcnt lgkmcnt(0)", "wait"))
            self.lds_q = []


def ws_of(ins):
    if ins.kind == "label":
        return 0
    if ins.text.startswith("s_nop"):
        return int(ins.text.split()[1]) + 1
    return 1


def hazard_need(prev, cur):
    need = 0
    pw, cr, cw = set(prev.wr), set(cur.rd), set(cur.wr)
    if prev.kind in ("valu", "trans"):
        if cur.kind == "mfma" and pw & cr:
            need = max(need, 2)
        if prev.kind == "trans" and cur.kind in ("valu",) and pw & cr:
            need = max(need, 1)
        sw = {r for r in pw if r[0] == "s"}
        if sw:
            if cur.kind in ("valu", "trans") and sw & cr:
                need = max(need, 2)
            if cur.kind in ("vmem",) and sw & cr:
                need = max(need, 5)
        if cur.kind in ("valu",) and cur.text.startswith(("v_readfirstlane", "v_readlane")) and pw & cr:
            need = max(need, 1)
        if cur.text.startswith("v_permlane") and pw & cr:
            need = max(need, 2)
    if prev.kind == "mfma":
        if cur.kind in ("valu", "trans", "ds", "vmem") and pw & (cr | cw):
            need = max(need, 8)
        if cur.kind == "mfma":
            ab = set(cur.rd) - set(cur.c_rd)
            if pw & ab:
                need = max(need, 8)
            cc = set(cur.c_rd)
            if pw & cc and pw != cc:
                need = max(need, 6)
        if cur.kind in ("valu", "trans") and set(prev.c_rd) & cw:
            need = max(need, 3)
    if prev.kind == "salu" and "m0" in pw and cur.kind == "vmem" and "lds" in cur.text:
        need = max(need, 1)
    if prev.kind == "vmem" and ("store_dwordx4" in prev.text) and cur.kind in ("valu", "trans") and set(prev.rd) & cw:
        need = max(need, 2)
    return need


def fix_hazards(lst, stats):
    out = []
    for ins in lst:
        if ins.kind in ("label",):
            out.append(ins)
            continue
        dist = 0
        add = 0
        for prev in reversed(out[-40:]):
            if prev.kind == "label" and prev.text.startswith("L_rare"):
                break
            n = hazard_need(prev, ins)
            if n > dist:
                add = max(add, n - dist)
            dist += ws_of(prev)
            if dist >= 20:
                break
        if add:
            stats["nops"] = stats.get("nops", 0) + 1
            stats["nop_ws"] = stats.get("nop_ws", 0) + add
            out.append(Inst("s_nop %d" % (add - 1), "nop"))
        out.append(ins)
    return out


def merge(anchors, streams, budget=8):
    out = []
    streams = [list(s) for s in streams]
    for i, a in enumerate(anchors):
        out.append(a)
        left = budget
        progress = True
        while left > 0 and progress:
            progress = False
            for s in streams:
                if s and s[0][0] <= i and s[0][1].cost <= left:
                    left -= s[0][1].cost
                    out.append(s.pop(0)[1])
                    progress = True
                    break
    for s in streams:
        for _, ins in s:
            out.append(ins)
    return out


def S_reg(p, b, kb):
    return V_S + p * 24 + (b * 2 + kb) * 4


def P_reg(p, b):
    return V_P + p * 12 + b * 4


def Kfrag(f):
    return A_K + (f % 8) * 4


def Vfrag(f):
    return A_V + (f % 8) * 4


def k_read(f, slot):
    kb, c = f // 8, f % 8
    return ds_rd128(Kfrag(f), V_KA + (c & 3), LDS_K + slot * SLOT + kb * 8192 + (c >> 2) * 256)


def v_reads(dblk, slot):
    base = slot * SLOT + (dblk >> 3) * 256
    return [ds_rdtr(Vfrag(dblk), V_VA + (dblk & 7), base),
            ds_rdtr(Vfrag(dblk) + 2, V_VA + (dblk & 7), base + 8192)]


def qk_anchors(p):
    L = []
    for f in range(16):
        kb, c = f // 8, f % 8
        for b in range(3):
            D = ("v", S_reg(p, b, kb))
            L.append(mfma(D, ("a", Kfrag(f)), ("v", V_Q + (b * 8 + c) * 4), 0 if c == 0 else D))
    return L


def pv_anchors(p):
    L = []
    for d in range(16):
        for b in range(3):
            D = ("a", A_O + (b * 16 + d) * 4)
            L.append(mfma(D, ("a", Vfrag(d)), ("v", P_reg(p, b)), D))
    return L


def ones_mfmas(p):
    return [mfma(("v", V_LS + b * 4), ("v", V_ONES), ("v", P_reg(p, b)), 0) for b in range(3)]


PART_A = [(0, 0), (1, 0), (0, 1), (1, 1)]
PART_B = [(2, 0), (2, 1)]


def exp_chain(p, quads, tbase):
    L = []
    for qi, (b, kb) in enumerate(quads):
        for r in range(4):
            t = tbase + qi * 4 + r
            L.append(v_fma_s(t, S_reg(p, b, kb) + r, S_C, V_M + b))
            L.append(v_exp(t, t))
    return L


def cvt_list(p, quads, tbase):
    L = []
    for qi, (b, kb) in enumerate(quads):
        for h in range(2):
            t = tbase + qi * 4 + h * 2
            L.append(v_cvtpk(P_reg(p, b) + kb * 2 + h, t, t + 1))
    return L


def dma_tile(is_v, slot):
    L = [salu("s_add_u32 m0, s%d, %d" % (S_WB, (LDS_V if is_v else LDS_K) + slot * SLOT), ["s%d" % S_WB], ["m0", "scc"])]
    srd = S_V if is_v else S_K
    off = S_VOFF if is_v else S_KOFF
    vb = V_DV if is_v else V_DK
    for j in range(4):
        L.append(Inst("buffer_load_dwordx4 v%d, s[%d:%d], s%d offen offset:%d lds" % (vb + j, srd, srd + 3, off, j * 1024),
                      "vmem", ["v%d" % (vb + j), "m0"], []))
    L.append(salu("s_add_u32 s%d, s%d, %d" % (off, off, SLOT), ["s%d" % off], ["s%d" % off, "scc"]))
    return L


def tile_max(em, p, first):
    for b in range(3):
        s0, s1 = S_reg(p, b, 0), S_reg(p, b, 1)
        x = V_X + b
        em.add(valu("v_max3_f32 v%d, v%d, v%d, v%d" % (x, s0, s0 + 1, s0 + 2), R("v", s0, 3), ["v%d" % x]))
        em.add(valu("v_max3_f32 v%d, v%d, v%d, v%d" % (x, x, s0 + 3, s1), ["v%d" % x, "v%d" % (s0 + 3), "v%d" % s1], ["v%d" % x]))
        em.add(valu("v_max3_f32 v%d, v%d, v%d, v%d" % (x, x, s1 + 1, s1 + 2), ["v%d" % x, "v%d" % (s1 + 1), "v%d" % (s1 + 2)], ["v%d" % x]))
        em.add(valu("v_max_f32 v%d, v%d, v%d" % (x, x, s1 + 3), ["v%d" % x, "v%d" % (s1 + 3)], ["v%d" % x]))
    for hop in (5, 6):
        for b in range(3):
            em.add(Inst("ds_bpermute_b32 v%d, v%d, v%d" % (V_T0 + b, hop, V_X + b), "ds",
                        ["v%d" % hop, "v%d" % (V_X + b)], ["v%d" % (V_T0 + b)]))
        for b in range(3):
            em.add(valu("v_max_f32 v%d, v%d, v%d" % (V_X + b, V_X + b, V_T0 + b), ["v%d" % (V_X + b), "v%d" % (V_T0 + b)], ["v%d" % (V_X + b)]))
    for b in range(3):
        em.add(valu("v_mul_f32 v%d, s%d, v%d" % (V_X + b, S_C, V_X + b), ["v%d" % (V_X + b), "s%d" % S_C], ["v%d" % (V_X + b)]))


def gen():
    em = Em()
    A = em.add
    stats = {}

    em.raw("s_cmp_ge_u32 s2, 256", "salu")
    em.raw("s_cbranch_scc1 L_end", "salu")
    em.raw("s_load_dwordx4 s[28:31], s[0:1], 0", "salu")
    em.raw("s_load_dwordx4 s[32:35], s[0:1], 16", "salu")
    A(valu("v_and_b32 v1, 63, v0", ["v0"], ["v1"]))
    A(valu("v_lshrrev_b32 v2, 6, v0", ["v0"], ["v2"]))
    A(valu("v_readfirstlane_b32 s%d, v2" % S_W, ["v2"], ["s%d" % S_W]))
    em.raw("s_lshr_b32 s36, s2, 4", "salu")
    em.raw("s_lshl_b32 s36, s36, 3", "salu")
    em.raw("s_and_b32 s37, s2, 7", "salu")
    em.raw("s_or_b32 s36, s36, s37", "salu")
    em.raw("s_lshr_b32 s37, s2, 3", "salu")
    em.raw("s_and_b32 s37, s37, 1", "salu")
    em.raw("s_mov_b32 s%d, 0x3db8aa3b" % S_C, "salu")
    em.raw("s_mov_b32 s%d, 0x%08x" % (S_THR, float_bits(THR)), "salu")
    em.raw("s_lshl_b32 s%d, s%d, 12" % (S_WB, S_W), "salu")
    em.raw("s_waitcnt lgkmcnt(0)", "wait")
    em.raw("s_mul_i32 s38, s36, 196608", "salu")
    em.raw("s_add_u32 s%d, s28, s38" % S_Q, "salu")
    em.raw("s_addc_u32 s%d, s29, 0" % (S_Q + 1), "salu")
    em.raw("s_and_b32 s%d, s%d, 0xffff" % (S_Q + 1, S_Q + 1), "salu")
    em.raw("s_mov_b32 s%d, 196608" % (S_Q + 2), "salu")
    em.raw("s_mov_b32 s%d, 0x00020000" % (S_Q + 3), "salu")
    em.raw("s_add_u32 s%d, s34, s38" % S_O, "salu")
    em.raw("s_addc_u32 s%d, s35, 0" % (S_O + 1), "salu")
    em.raw("s_and_b32 s%d, s%d, 0xffff" % (S_O + 1, S_O + 1), "salu")
    em.raw("s_mov_b32 s%d, 196608" % (S_O + 2), "salu")
    em.raw("s_mov_b32 s%d, 0x00020000" % (S_O + 3), "salu")
    em.raw("s_mul_i32 s38, s36, 524288", "salu")
    em.raw("s_add_u32 s%d, s30, s38" % S_K, "salu")
    em.raw("s_addc_u32 s%d, s31, 0" % (S_K + 1), "salu")
    em.raw("s_and_b32 s%d, s%d, 0xffff" % (S_K + 1, S_K + 1), "salu")
    em.raw("s_mov_b32 s%d, 524288" % (S_K + 2), "salu")
    em.raw("s_mov_b32 s%d, 0x00020000" % (S_K + 3), "salu")
    em.raw("s_add_u32 s%d, s32, s38" % S_V, "salu")
    em.raw("s_addc_u32 s%d, s33, 0" % (S_V + 1), "salu")
    em.raw("s_and_b32 s%d, s%d, 0xffff" % (S_V + 1, S_V + 1), "salu")
    em.raw("s_mov_b32 s%d, 524288" % (S_V + 2), "salu")
    em.raw("s_mov_b32 s%d, 0x00020000" % (S_V + 3), "salu")

    A(valu("v_and_b32 v2, 15, v1", ["v1"], ["v2"]))
    A(valu("v_lshrrev_b32 v3, 4, v1", ["v1"], ["v3"]))
    A(valu("v_lshrrev_b32 v4, 5, v1", ["v1"], ["v4"]))
    A(valu("v_and_b32 v7, 31, v1", ["v1"], ["v7"]))
    em.raw("s_and_b32 s38, s%d, 1" % S_W, "salu")
    em.raw("s_lshl_b32 s38, s38, 3", "salu")
    for j in range(4):
        A(valu("v_add_u32 v8, %d, v4" % (2 * j), ["v4"], ["v8"]))
        A(valu("v_or_b32 v8, s38, v8", ["v8", "s38"], ["v8"]))
        A(valu("v_xor_b32 v8, v8, v7", ["v8", "v7"], ["v8"]))
        A(valu("v_lshlrev_b32 v8, 4, v8", ["v8"], ["v8"]))
        A(valu("v_lshl_add_u32 v%d, v4, 9, v8" % (V_DK + j), ["v4", "v8"], ["v%d" % (V_DK + j)]))
        A(valu("v_add_u32 v8, %d, v4" % (2 * j), ["v4"], ["v8"]))
        A(valu("v_lshlrev_b32 v8, 1, v8", ["v8"], ["v8"]))
        A(valu("v_xor_b32 v8, v8, v7", ["v8", "v7"], ["v8"]))
        A(valu("v_lshlrev_b32 v8, 4, v8", ["v8"], ["v8"]))
        A(valu("v_lshl_add_u32 v%d, v4, 9, v8" % (V_DV + j), ["v4", "v8"], ["v%d" % (V_DV + j)]))
    for cc in range(4):
        A(valu("v_add_u32 v8, %d, v3" % (cc * 4), ["v3"], ["v8"]))
        A(valu("v_xor_b32 v8, v8, v2", ["v8", "v2"], ["v8"]))
        A(valu("v_lshlrev_b32 v8, 4, v8", ["v8"], ["v8"]))
        A(valu("v_lshl_add_u32 v%d, v2, 9, v8" % (V_KA + cc), ["v2", "v8"], ["v%d" % (V_KA + cc)]))
    A(valu("v_lshrrev_b32 v8, 2, v2", ["v2"], ["v8"]))
    A(valu("v_lshl_add_u32 v8, v3, 2, v8", ["v3", "v8"], ["v8"]))
    A(valu("v_and_b32 v9, 7, v8", ["v8"], ["v9"]))
    A(valu("v_and_b32 v10, 3, v2", ["v2"], ["v10"]))
    A(valu("v_lshrrev_b32 v11, 1, v10", ["v10"], ["v11"]))
    A(valu("v_and_b32 v10, 1, v10", ["v10"], ["v10"]))
    A(valu("v_lshlrev_b32 v10, 3, v10", ["v10"], ["v10"]))
    A(valu("v_lshl_add_u32 v10, v8, 9, v10", ["v8", "v10"], ["v10"]))
    A(valu("v_add_u32 v10, %d, v10" % LDS_V, ["v10"], ["v10"]))
    for dd in range(8):
        A(valu("v_xor_b32 v12, %d, v9" % dd, ["v9"], ["v12"]))
        A(valu("v_lshl_add_u32 v12, v12, 1, v11", ["v12", "v11"], ["v12"]))
        A(valu("v_lshl_add_u32 v%d, v12, 4, v10" % (V_VA + dd), ["v12", "v10"], ["v%d" % (V_VA + dd)]))
    A(valu("v_xor_b32 v5, 16, v1", ["v1"], ["v5"]))
    A(valu("v_lshlrev_b32 v5, 2, v5", ["v5"], ["v5"]))
    A(valu("v_xor_b32 v6, 32, v1", ["v1"], ["v6"]))
    A(valu("v_lshlrev_b32 v6, 2, v6", ["v6"], ["v6"]))
    for i in range(4):
        A(valu("v_mov_b32 v%d, 0x3f803f80" % (V_ONES + i), [], ["v%d" % (V_ONES + i)]))

    em.raw("s_mov_b32 s%d, s%d" % (S_KOFF, S_WB), "salu")
    em.raw("s_mov_b32 s%d, s%d" % (S_VOFF, S_WB), "salu")
    A(dma_tile(False, 0))
    em.raw("s_mul_i32 s38, s37, 192", "salu")
    em.raw("s_mul_i32 s39, s%d, 48" % S_W, "salu")
    em.raw("s_add_u32 s38, s38, s39", "salu")
    em.raw("s_lshl_b32 s38, s38, 9", "salu")
    A(valu("v_lshlrev_b32 v8, 4, v3", ["v3"], ["v8"]))
    A(valu("v_lshl_add_u32 v8, v2, 9, v8", ["v2", "v8"], ["v8"]))
    A(valu("v_add_u32 v9, 8192, v8", ["v8"], ["v9"]))
    A(valu("v_add_u32 v10, 16384, v8", ["v8"], ["v10"]))
    for b in range(3):
        for c in range(8):
            q = V_Q + (b * 8 + c) * 4
            A(Inst("buffer_load_dwordx4 %s, v%d, s[%d:%d], s38 offen offset:%d" % (vq(q), 8 + b, S_Q, S_Q + 3, c * 64),
                   "vmem", ["v%d" % (8 + b), "s38"], R("v", q, 4)))
    for (isv, slot) in ((False, 1), (True, 0), (False, 2), (True, 1), (False, 3), (True, 2)):
        A(dma_tile(isv, slot))
    for i in range(192):
        A(valu("v_accvgpr_write_b32 a%d, 0" % i, [], ["a%d" % i]))
    for b in range(3):
        A(valu("v_mov_b32 v%d, 0" % (V_L + b), [], ["v%d" % (V_L + b)]))
    em.raw("s_waitcnt vmcnt(24)", "wait")
    em.raw("s_barrier", "barrier")
    for f in range(4):
        A(k_read(f, 0))
    for i, m in enumerate(qk_anchors(0)):
        A(m)
        if i % 3 == 0 and i // 3 + 4 < 16:
            A(k_read(i // 3 + 4, 0))
    tile_max(em, 0, True)
    for b in range(3):
        A(valu("v_mov_b32 v%d, v%d" % (V_M + b, V_X + b), ["v%d" % (V_X + b)], ["v%d" % (V_M + b)]))
    for ins in exp_chain(0, PART_A, V_E):
        A(ins)
    em.raw("s_waitcnt vmcnt(16)", "wait")
    em.raw("s_barrier", "barrier")
    for f in range(PDK):
        A(k_read(f, 1))

    em.raw("s_getpc_b64 s[%d:%d]" % (S_RA, S_RA + 1), "salu")
    em.label("L_pc0")
    em.raw("s_add_u32 s%d, s%d, L_rare0-L_pc0" % (S_RA, S_RA), "salu")
    em.raw("s_addc_u32 s%d, s%d, 0" % (S_RA + 1, S_RA + 1), "salu")
    em.raw("s_getpc_b64 s[%d:%d]" % (S_RA + 2, S_RA + 3), "salu")
    em.label("L_pc1")
    em.raw("s_add_u32 s%d, s%d, L_rare1-L_pc1" % (S_RA + 2, S_RA + 2), "salu")
    em.raw("s_addc_u32 s%d, s%d, 0" % (S_RA + 3, S_RA + 3), "salu")
    em.raw("s_mov_b32 s%d, 0" % S_CNT, "salu")

    def body(t, last, dma_k, dma_v, vm_wait):
        p = t & 1
        sK, sV = (t + 1) & 3, t & 3
        anchors = [] if last else qk_anchors(p ^ 1)
        rd = []
        if not last:
            for f in range(PDK, 16):
                rd.append((3 * (f - PDK), k_read(f, sK)))
        n1 = len(anchors)
        vta = []
        for f in range(PDV):
            for x in v_reads(f, sV):
                vta.append((max(0, n1 - 12), x))
        soft = [(0, x) for x in exp_chain(p, PART_B, V_E2)]
        soft += [(0, x) for x in cvt_list(p, PART_A, V_E)]
        soft += [(0, x) for x in cvt_list(p, PART_B, V_E2)]
        if last:
            seq = [x for _, x in soft] + ones_mfmas(p) + [x for _, x in vta]
        else:
            pos = 36
            anchors = anchors[:pos] + ones_mfmas(p) + anchors[pos:]
            seq = merge(anchors, [rd, soft, vta])
            softset = set(id(x) for _, x in soft)
            lastsoft = max(i for i, x in enumerate(seq) if id(x) in softset)
            firstones = min(i for i, x in enumerate(seq) if x.kind == 'mfma' and ('v%d' % V_ONES) in x.rd)
            assert lastsoft < firstones, (lastsoft, firstones)
        for x in seq:
            A(x)
        A(valu("v_max3_f32 v%d, v%d, v%d, v%d" % (V_X, V_LS, V_LS + 4, V_LS + 8), ["v%d" % V_LS, "v%d" % (V_LS + 4), "v%d" % (V_LS + 8)], ["v%d" % V_X]))
        A(valu("v_cmp_nle_f32 vcc, v%d, s%d" % (V_X, S_THR), ["v%d" % V_X, "s%d" % S_THR], ["vcc"]))
        lbl = "L_ok_%d" % body.count
        body.count += 1
        em.raw("s_cbranch_vccz %s" % lbl, "salu")
        em.raw("s_swappc_b64 s[%d:%d], s[%d:%d]" % (S_RET, S_RET + 1, S_RA + 2 * p, S_RA + 2 * p + 1), "salu")
        em.label(lbl)
        for b in range(3):
            A(valu("v_add_f32 v%d, v%d, v%d" % (V_L + b, V_L + b, V_LS + 4 * b), ["v%d" % (V_L + b), "v%d" % (V_LS + 4 * b)], ["v%d" % (V_L + b)]))
        em.raw("s_waitcnt vmcnt(%d)" % vm_wait, "wait")
        em.raw("s_barrier", "barrier")
        anchors = pv_anchors(p)
        rd = []
        for f in range(PDV, 16):
            for x in v_reads(f, sV):
                rd.append((3 * (f - PDV), x))
        kta = []
        if not last:
            for f in range(PDK):
                kta.append((36, k_read(f, (t + 2) & 3)))
        dm = []
        if dma_k:
            dm += [(0, x) for x in dma_tile(False, (t + 4) & 3)]
        if dma_v:
            dm += [(0, x) for x in dma_tile(True, (t + 3) & 3)]
        soft = [] if last else [(1, x) for x in exp_chain(p ^ 1, PART_A, V_E)]
        for x in merge(anchors, [rd, soft, dm, kta]):
            A(x)

    body.count = 0
    q0 = [set(x) for x in em.lds_q]
    em.label("L_loop")
    for t in range(4):
        body(t, False, True, True, 8)
    q1 = [set(x) for x in em.lds_q]
    assert q0 == q1, (q0, q1)
    em.raw("s_add_u32 s%d, s%d, 1" % (S_CNT, S_CNT), "salu")
    em.raw("s_cmp_lt_u32 s%d, 7" % S_CNT, "salu")
    em.raw("s_cbranch_scc1 L_loop", "salu")
    body(28, False, False, True, 8)
    body(29, False, False, False, 4)
    body(30, False, False, False, 0)
    body(31, True, False, False, 0)

    em.flush_lds()
    import os
    if os.environ.get("DBG"):
        em.raw("s_load_dwordx2 s[48:49], s[0:1], 40", "salu")
        em.raw("s_waitcnt lgkmcnt(0)", "wait")
        em.raw("s_and_b32 s49, s49, 0xffff", "salu")
        em.raw("s_mov_b32 s50, 4194304", "salu")
        em.raw("s_mov_b32 s51, 0x00020000", "salu")
        em.raw("s_lshl_b32 s52, s2, 2", "salu")
        em.raw("s_add_u32 s52, s52, s%d" % S_W, "salu")
        em.raw("s_mul_i32 s52, s52, 1536", "salu")
        A(valu("v_lshlrev_b32 v2, 2, v1", ["v1"], ["v2"]))
        for b in range(3):
            A(Inst("buffer_store_dword v%d, v2, s[48:51], s52 offen offset:%d" % (V_L + b, b * 256), "vmem", ["v%d" % (V_L + b), "v2"], []))
            A(Inst("buffer_store_dword v%d, v2, s[48:51], s52 offen offset:%d" % (V_M + b, 768 + b * 256), "vmem", ["v%d" % (V_M + b), "v2"], []))
    for b in range(3):
        A(valu("v_rcp_f32 v%d, v%d" % (V_X + b, V_L + b), ["v%d" % (V_L + b)], ["v%d" % (V_X + b)], trans=True))
    A(valu("v_and_b32 v2, 15, v1", ["v1"], ["v2"]))
    A(valu("v_lshrrev_b32 v3, 4, v1", ["v1"], ["v3"]))
    A(valu("v_lshlrev_b32 v8, 3, v3", ["v3"], ["v8"]))
    A(valu("v_lshl_add_u32 v8, v2, 9, v8", ["v2", "v8"], ["v8"]))
    A(valu("v_add_u32 v9, 8192, v8", ["v8"], ["v9"]))
    A(valu("v_add_u32 v10, 16384, v8", ["v8"], ["v10"]))
    k = 0
    for b in range(3):
        for d in range(16):
            base = 12 + (k % 8) * 6
            k += 1
            for r in range(4):
                A(valu("v_accvgpr_read_b32 v%d, a%d" % (base + r, A_O + (b * 16 + d) * 4 + r), ["a%d" % (A_O + (b * 16 + d) * 4 + r)], ["v%d" % (base + r)]))
            for r in range(4):
                A(valu("v_mul_f32 v%d, v%d, v%d" % (base + r, base + r, V_X + b), ["v%d" % (base + r), "v%d" % (V_X + b)], ["v%d" % (base + r)]))
            A(v_cvtpk(base + 4, base, base + 1))
            A(v_cvtpk(base + 5, base + 2, base + 3))
            A(Inst("buffer_store_dwordx2 v[%d:%d], v%d, s[%d:%d], s38 offen offset:%d" % (base + 4, base + 5, 8 + b, S_O, S_O + 3, d * 32),
                   "vmem", ["v%d" % (base + 4), "v%d" % (base + 5), "v%d" % (8 + b), "s38"], []))
    em.label("L_end")
    em.raw("s_endpgm")

    for p in range(2):
        em.label("L_rare%d" % p)
        em.raw("s_nop 7")
        em.raw("s_nop 7")
        tile_max(em, p, False)
        for b in range(3):
            x, f = V_X + b, V_T0 + b
            A(valu("v_max_f32 v%d, v%d, v%d" % (x, x, V_M + b), ["v%d" % x, "v%d" % (V_M + b)], ["v%d" % x]))
            A(valu("v_sub_f32 v%d, v%d, v%d" % (f, V_M + b, x), ["v%d" % (V_M + b), "v%d" % x], ["v%d" % f]))
            A(v_exp(f, f))
            A(valu("v_mov_b32 v%d, v%d" % (V_M + b, x), ["v%d" % x], ["v%d" % (V_M + b)]))
            A(valu("v_mul_f32 v%d, v%d, v%d" % (V_L + b, V_L + b, f), ["v%d" % (V_L + b), "v%d" % f], ["v%d" % (V_L + b)]))
            for i in range(64):
                a = A_O + b * 64 + i
                t = V_T0 + 6 + (i % 8)
                A(valu("v_accvgpr_read_b32 v%d, a%d" % (t, a), ["a%d" % a], ["v%d" % t]))
                A(valu("v_mul_f32 v%d, v%d, v%d" % (t, t, f), ["v%d" % t, "v%d" % f], ["v%d" % t]))
                A(valu("v_accvgpr_write_b32 a%d, v%d" % (a, t), ["v%d" % t], ["a%d" % a]))
        for ins in exp_chain(p, PART_A, V_E):
            A(ins)
        for ins in exp_chain(p, PART_B, V_E2):
            A(ins)
        for ins in cvt_list(p, PART_A, V_E) + cvt_list(p, PART_B, V_E2):
            A(ins)
        for m in ones_mfmas(p):
            A(m)
        em.raw("s_nop 7")
        em.raw("s_nop 7")
        em.raw("s_setpc_b64 s[%d:%d]" % (S_RET, S_RET + 1), "salu")

    return em.out, stats


def float_bits(x):
    import struct
    return struct.unpack("<I", struct.pack("<f", x))[0]


HEADER = """; Kernarg layout for this problem (48 bytes, ptrs only, base s[0:1]):
;   offset  40: d_ws      268435456 bytes workspace (unspecified values whenever your kernel or launch list starts; a list's later launches find what earlier ones wrote)
; grid=ceil(out_elems/256), lds=0). Harness parses it; keep it on one line.
; @launch grid=(256,1,1) block=(256,1,1) lds=131072
.amdgcn_target "amdgcn-amd-amdhsa--gfx950"
.text
.globl {n}_kernel
.p2align 8
.type {n}_kernel,@function
{n}_kernel:
"""

FOOTER = """.section .rodata,"a"
.p2align 6
.amdhsa_kernel {n}_kernel
  .amdhsa_next_free_vgpr 512
  .amdhsa_next_free_sgpr 102
  .amdhsa_accum_offset 256
  .amdhsa_group_segment_fixed_size 0
  .amdhsa_kernarg_size 48
  .amdhsa_user_sgpr_count 2
  .amdhsa_user_sgpr_kernarg_segment_ptr 1
  .amdhsa_system_sgpr_workgroup_id_x 1
.end_amdhsa_kernel
"""


def main():
    out, stats = gen()
    out = fix_hazards(out, stats)
    txt = HEADER.format(n=NAME)
    for ins in out:
        if ins.kind == "label":
            txt += ins.text + "\n"
        else:
            txt += "    " + ins.text + "\n"
    txt += FOOTER.format(n=NAME)
    path = sys.argv[1] if len(sys.argv) > 1 else "cdna_kernels/%s.s" % NAME
    open(path, "w").write(txt)
    print("wrote", path, "insts:", len(out), stats)


if __name__ == "__main__":
    main()
```

```python
import sys
import math

NAME = "standalone__mha_softmax__near_ridge"

PDK = 3
PDV = 3
THR = 65536.0

V_TID, V_LANE = 0, 1
V_T0 = 2
V_Q = 16
V_S = 112
V_P = 160
V_E = 184
V_LS = 200
V_ONES = 212
V_M = 216
V_L = 219
V_KA = 222
V_VA = 226
V_DK = 234
V_DV = 238
V_E2 = 242
V_KA_E = 64
V_X = 250
A_O = 0
A_K = 192
A_V = 224

S_Q, S_K, S_V, S_O = 4, 8, 12, 16
S_W = 20
S_C = 21
S_THR = 22
S_WB = 23
S_KOFF = 24
S_VOFF = 25
S_CNT = 26
S_T0 = 28
S_RA = 40
S_RET = 44

LDS_K = 0
LDS_V = 65536
SLOT = 16384


def vq(b, n=4):
    return "v[%d:%d]" % (b, b + n - 1)


def aq(b, n=4):
    return "a[%d:%d]" % (b, b + n - 1)


def R(kind, b, n):
    return ["%s%d" % (kind, b + i) for i in range(n)]


class Inst:
    __slots__ = ("text", "kind", "rd", "wr", "cost", "c_rd")

    def __init__(self, text, kind, rd=(), wr=(), cost=4, c_rd=()):
        self.text, self.kind, self.rd, self.wr = text, kind, list(rd), list(wr)
        self.cost = cost
        self.c_rd = list(c_rd)


def mfma(D, A, B, C):
    def q(x):
        return ("v" if x[0] == "v" else "a") + "[%d:%d]" % (x[1], x[1] + 3)
    ctext = "0" if C == 0 else q(C)
    rd = R(A[0], A[1], 4) + R(B[0], B[1], 4)
    c_rd = [] if C == 0 else R(C[0], C[1], 4)
    return Inst("v_mfma_f32_16x16x32_bf16 %s, %s, %s, %s" % (q(D), q(A), q(B), ctext),
                "mfma", rd + c_rd, R(D[0], D[1], 4), 8, c_rd)


def valu(text, rd, wr, trans=False):
    return Inst(text, "trans" if trans else "valu", rd, wr, 8 if trans else 4)


def v_fma_s(d, s, sreg, m):
    return valu("v_fma_f32 v%d, v%d, s%d, -v%d" % (d, s, sreg, m), ["v%d" % s, "v%d" % m], ["v%d" % d])


def v_exp(d, s):
    return valu("v_exp_f32 v%d, v%d" % (d, s), ["v%d" % s], ["v%d" % d], trans=True)


def v_cvtpk(d, a, b):
    return valu("v_cvt_pk_bf16_f32 v%d, v%d, v%d" % (d, a, b), ["v%d" % a, "v%d" % b], ["v%d" % d])


def ds_rd128(dst_a, addr_v, off):
    return Inst("ds_read_b128 %s, v%d offset:%d" % (aq(dst_a), addr_v, off), "ds",
                ["v%d" % addr_v], R("a", dst_a, 4))


def ds_rdtr(dst_a, addr_v, off):
    return Inst("ds_read_b64_tr_b16 %s, v%d offset:%d" % (aq(dst_a, 2), addr_v, off), "ds",
                ["v%d" % addr_v], R("a", dst_a, 2))


def salu(text, rd=(), wr=()):
    return Inst(text, "salu", rd, wr, 4)


def other(text, kind="other", rd=(), wr=()):
    return Inst(text, kind, rd, wr, 4)


class Em:
    def __init__(self):
        self.out = []
        self.lds_q = []

    def add(self, ins):
        if isinstance(ins, list):
            for x in ins:
                self.add(x)
            return
        need = -1
        touched = set(ins.rd) | set(ins.wr)
        for i, dst in enumerate(self.lds_q):
            if touched & dst:
                need = i
        if need >= 0:
            n = len(self.lds_q) - 1 - need
            self.out.append(Inst("s_waitcnt lgkmcnt(%d)" % n, "wait"))
            self.lds_q = self.lds_q[need + 1:]
        self.out.append(ins)
        if ins.kind == "ds":
            self.lds_q.append(set(ins.wr))

    def raw(self, text, kind="other"):
        self.out.append(Inst(text, kind))

    def label(self, name):
        self.out.append(Inst(name + ":", "label", cost=0))

    def flush_lds(self):
        if self.lds_q:
            self.out.append(Inst("s_waitcnt lgkmcnt(0)", "wait"))
            self.lds_q = []


def ws_of(ins):
    if ins.kind == "label":
        return 0
    if ins.text.startswith("s_nop"):
        return int(ins.text.split()[1]) + 1
    return 1


def hazard_need(prev, cur):
    need = 0
    pw, cr, cw = set(prev.wr), set(cur.rd), set(cur.wr)
    if prev.kind in ("valu", "trans"):
        if cur.kind == "mfma" and pw & cr:
            need = max(need, 2)
        if prev.kind == "trans" and cur.kind in ("valu",) and pw & cr:
            need = max(need, 1)
        sw = {r for r in pw if r[0] == "s"}
        if sw:
            if cur.kind in ("valu", "trans") and sw & cr:
                need = max(need, 2)
            if cur.kind in ("vmem",) and sw & cr:
                need = max(need, 5)
        if cur.kind in ("valu",) and cur.text.startswith(("v_readfirstlane", "v_readlane")) and pw & cr:
            need = max(need, 1)
        if cur.text.startswith("v_permlane") and pw & cr:
            need = max(need, 2)
    if prev.kind == "mfma":
        if cur.kind in ("valu", "trans", "ds", "vmem") and pw & (cr | cw):
            need = max(need, 8)
        if cur.kind == "mfma":
            ab = set(cur.rd) - set(cur.c_rd)
            if pw & ab:
                need = max(need, 8)
            cc = set(cur.c_rd)
            if pw & cc and pw != cc:
                need = max(need, 6)
        if cur.kind in ("valu", "trans") and set(prev.c_rd) & cw:
            need = max(need, 3)
    if prev.kind == "salu" and "m0" in pw and cur.kind == "vmem" and "lds" in cur.text:
        need = max(need, 1)
    if prev.kind == "vmem" and ("store_dwordx4" in prev.text) and cur.kind in ("valu", "trans") and set(prev.rd) & cw:
        need = max(need, 2)
    return need


def fix_hazards(lst, stats):
    out = []
    for ins in lst:
        if ins.kind in ("label",):
            out.append(ins)
            continue
        dist = 0
        add = 0
        for prev in reversed(out[-40:]):
            if prev.kind == "label" and prev.text.startswith("L_rare"):
                break
            n = hazard_need(prev, ins)
            if n > dist:
                add = max(add, n - dist)
            dist += ws_of(prev)
            if dist >= 20:
                break
        if add:
            stats["nops"] = stats.get("nops", 0) + 1
            stats["nop_ws"] = stats.get("nop_ws", 0) + add
            out.append(Inst("s_nop %d" % (add - 1), "nop"))
        out.append(ins)
    return out


def merge(anchors, streams, budget=8):
    out = []
    streams = [list(s) for s in streams]
    for i, a in enumerate(anchors):
        out.append(a)
        left = budget
        progress = True
        while left > 0 and progress:
            progress = False
            for s in streams:
                if s and s[0][0] <= i and s[0][1].cost <= left:
                    left -= s[0][1].cost
                    out.append(s.pop(0)[1])
                    progress = True
                    break
    for s in streams:
        for _, ins in s:
            out.append(ins)
    return out


def S_reg(p, b, kb):
    return V_S + p * 24 + (b * 2 + kb) * 4


def P_reg(p, b):
    return V_P + p * 12 + b * 4


def Kfrag(f):
    return A_K + (f % 8) * 4


def Vfrag(f):
    return A_V + (f % 8) * 4


def k_read(f, slot):
    kb, c = f // 8, f % 8
    return ds_rd128(Kfrag(f), V_KA + (c & 3), LDS_K + slot * SLOT + kb * 8192 + (c >> 2) * 256)


def v_reads(dblk, slot):
    base = slot * SLOT + (dblk >> 3) * 256
    return [ds_rdtr(Vfrag(dblk), V_VA + (dblk & 7), base),
            ds_rdtr(Vfrag(dblk) + 2, V_VA + (dblk & 7), base + 8192)]


def qk_anchors(p):
    L = []
    for f in range(16):
        kb, c = f // 8, f % 8
        for b in range(3):
            D = ("v", S_reg(p, b, kb))
            L.append(mfma(D, ("a", Kfrag(f)), ("v", V_Q + (b * 8 + c) * 4), 0 if c == 0 else D))
    return L


def pv_anchors(p):
    L = []
    for d in range(16):
        for b in range(3):
            D = ("a", A_O + (b * 16 + d) * 4)
            L.append(mfma(D, ("a", Vfrag(d)), ("v", P_reg(p, b)), D))
    return L


def ones_mfmas(p):
    return [mfma(("v", V_LS + b * 4), ("v", V_ONES), ("v", P_reg(p, b)), 0) for b in range(3)]


PART_A = [(0, 0), (1, 0), (0, 1), (1, 1)]
PART_B = [(2, 0), (2, 1)]


def exp_chain(p, quads, tbase):
    L = []
    for qi, (b, kb) in enumerate(quads):
        for r in range(4):
            t = tbase + qi * 4 + r
            L.append(v_fma_s(t, S_reg(p, b, kb) + r, S_C, V_M + b))
            L.append(v_exp(t, t))
    return L


def cvt_list(p, quads, tbase):
    L = []
    for qi, (b, kb) in enumerate(quads):
        for h in range(2):
            t = tbase + qi * 4 + h * 2
            L.append(v_cvtpk(P_reg(p, b) + kb * 2 + h, t, t + 1))
    return L


def dma_tile(is_v, slot):
    L = [salu("s_add_u32 m0, s%d, %d" % (S_WB, (LDS_V if is_v else LDS_K) + slot * SLOT), ["s%d" % S_WB], ["m0", "scc"])]
    srd = S_V if is_v else S_K
    off = S_VOFF if is_v else S_KOFF
    vb = V_DV if is_v else V_DK
    for j in range(4):
        L.append(Inst("buffer_load_dwordx4 v%d, s[%d:%d], s%d offen offset:%d lds" % (vb + j, srd, srd + 3, off, j * 1024),
                      "vmem", ["v%d" % (vb + j), "m0"], []))
    L.append(salu("s_add_u32 s%d, s%d, %d" % (off, off, SLOT), ["s%d" % off], ["s%d" % off, "scc"]))
    return L


def tile_max(em, p, first):
    for b in range(3):
        s0, s1 = S_reg(p, b, 0), S_reg(p, b, 1)
        x = V_X + b
        em.add(valu("v_max3_f32 v%d, v%d, v%d, v%d" % (x, s0, s0 + 1, s0 + 2), R("v", s0, 3), ["v%d" % x]))
        em.add(valu("v_max3_f32 v%d, v%d, v%d, v%d" % (x, x, s0 + 3, s1), ["v%d" % x, "v%d" % (s0 + 3), "v%d" % s1], ["v%d" % x]))
        em.add(valu("v_max3_f32 v%d, v%d, v%d, v%d" % (x, x, s1 + 1, s1 + 2), ["v%d" % x, "v%d" % (s1 + 1), "v%d" % (s1 + 2)], ["v%d" % x]))
        em.add(valu("v_max_f32 v%d, v%d, v%d" % (x, x, s1 + 3), ["v%d" % x, "v%d" % (s1 + 3)], ["v%d" % x]))
    for hop in (5, 6):
        for b in range(3):
            em.add(Inst("ds_bpermute_b32 v%d, v%d, v%d" % (V_T0 + b, hop, V_X + b), "ds",
                        ["v%d" % hop, "v%d" % (V_X + b)], ["v%d" % (V_T0 + b)]))
        for b in range(3):
            em.add(valu("v_max_f32 v%d, v%d, v%d" % (V_X + b, V_X + b, V_T0 + b), ["v%d" % (V_X + b), "v%d" % (V_T0 + b)], ["v%d" % (V_X + b)]))
    for b in range(3):
        em.add(valu("v_mul_f32 v%d, s%d, v%d" % (V_X + b, S_C, V_X + b), ["v%d" % (V_X + b), "s%d" % S_C], ["v%d" % (V_X + b)]))


import os
def stamp(em, i):
    if os.environ.get("TIME"):
        em.raw("s_memtime s[%d:%d]" % (60 + 2 * i, 61 + 2 * i), "salu")
        if i in (0, 4):
            em.raw("s_memrealtime s[%d:%d]" % (70 + i // 2, 71 + i // 2), "salu")
        em.raw("s_waitcnt lgkmcnt(0)", "wait")


def gen():
    em = Em()
    A = em.add
    stats = {}

    em.raw("s_cmp_ge_u32 s2, 256", "salu")
    em.raw("s_cbranch_scc1 L_end", "salu")
    stamp(em, 0)
    em.raw("s_load_dwordx4 s[28:31], s[0:1], 0", "salu")
    em.raw("s_load_dwordx4 s[32:35], s[0:1], 16", "salu")
    A(valu("v_and_b32 v1, 63, v0", ["v0"], ["v1"]))
    A(valu("v_lshrrev_b32 v2, 6, v0", ["v0"], ["v2"]))
    A(valu("v_readfirstlane_b32 s%d, v2" % S_W, ["v2"], ["s%d" % S_W]))
    em.raw("s_lshr_b32 s36, s2, 4", "salu")
    em.raw("s_lshl_b32 s36, s36, 3", "salu")
    em.raw("s_and_b32 s37, s2, 7", "salu")
    em.raw("s_or_b32 s36, s36, s37", "salu")
    em.raw("s_lshr_b32 s37, s2, 3", "salu")
    em.raw("s_and_b32 s37, s37, 1", "salu")
    em.raw("s_mov_b32 s%d, 0x3db8aa3b" % S_C, "salu")
    em.raw("s_mov_b32 s%d, 0x%08x" % (S_THR, float_bits(THR)), "salu")
    em.raw("s_lshl_b32 s%d, s%d, 12" % (S_WB, S_W), "salu")
    em.raw("s_waitcnt lgkmcnt(0)", "wait")
    em.raw("s_mul_i32 s38, s36, 196608", "salu")
    em.raw("s_add_u32 s%d, s28, s38" % S_Q, "salu")
    em.raw("s_addc_u32 s%d, s29, 0" % (S_Q + 1), "salu")
    em.raw("s_and_b32 s%d, s%d, 0xffff" % (S_Q + 1, S_Q + 1), "salu")
    em.raw("s_mov_b32 s%d, 196608" % (S_Q + 2), "salu")
    em.raw("s_mov_b32 s%d, 0x00020000" % (S_Q + 3), "salu")
    em.raw("s_add_u32 s%d, s34, s38" % S_O, "salu")
    em.raw("s_addc_u32 s%d, s35, 0" % (S_O + 1), "salu")
    em.raw("s_and_b32 s%d, s%d, 0xffff" % (S_O + 1, S_O + 1), "salu")
    em.raw("s_mov_b32 s%d, 196608" % (S_O + 2), "salu")
    em.raw("s_mov_b32 s%d, 0x00020000" % (S_O + 3), "salu")
    em.raw("s_mul_i32 s38, s36, 524288", "salu")
    em.raw("s_add_u32 s%d, s30, s38" % S_K, "salu")
    em.raw("s_addc_u32 s%d, s31, 0" % (S_K + 1), "salu")
    em.raw("s_and_b32 s%d, s%d, 0xffff" % (S_K + 1, S_K + 1), "salu")
    em.raw("s_mov_b32 s%d, 524288" % (S_K + 2), "salu")
    em.raw("s_mov_b32 s%d, 0x00020000" % (S_K + 3), "salu")
    em.raw("s_add_u32 s%d, s32, s38" % S_V, "salu")
    em.raw("s_addc_u32 s%d, s33, 0" % (S_V + 1), "salu")
    em.raw("s_and_b32 s%d, s%d, 0xffff" % (S_V + 1, S_V + 1), "salu")
    em.raw("s_mov_b32 s%d, 524288" % (S_V + 2), "salu")
    em.raw("s_mov_b32 s%d, 0x00020000" % (S_V + 3), "salu")

    A(valu("v_and_b32 v2, 15, v1", ["v1"], ["v2"]))
    A(valu("v_lshrrev_b32 v3, 4, v1", ["v1"], ["v3"]))
    A(valu("v_lshrrev_b32 v4, 5, v1", ["v1"], ["v4"]))
    A(valu("v_and_b32 v7, 31, v1", ["v1"], ["v7"]))
    em.raw("s_and_b32 s38, s%d, 1" % S_W, "salu")
    em.raw("s_lshl_b32 s38, s38, 3", "salu")
    for j in range(4):
        A(valu("v_add_u32 v8, %d, v4" % (2 * j), ["v4"], ["v8"]))
        A(valu("v_or_b32 v8, s38, v8", ["v8", "s38"], ["v8"]))
        A(valu("v_xor_b32 v8, v8, v7", ["v8", "v7"], ["v8"]))
        A(valu("v_lshlrev_b32 v8, 4, v8", ["v8"], ["v8"]))
        A(valu("v_lshl_add_u32 v%d, v4, 9, v8" % (V_DK + j), ["v4", "v8"], ["v%d" % (V_DK + j)]))
        A(valu("v_add_u32 v8, %d, v4" % (2 * j), ["v4"], ["v8"]))
        A(valu("v_lshlrev_b32 v8, 1, v8", ["v8"], ["v8"]))
        A(valu("v_xor_b32 v8, v8, v7", ["v8", "v7"], ["v8"]))
        A(valu("v_lshlrev_b32 v8, 4, v8", ["v8"], ["v8"]))
        A(valu("v_lshl_add_u32 v%d, v4, 9, v8" % (V_DV + j), ["v4", "v8"], ["v%d" % (V_DV + j)]))
    for cc in range(4):
        A(valu("v_add_u32 v8, %d, v3" % (cc * 4), ["v3"], ["v8"]))
        A(valu("v_xor_b32 v8, v8, v2", ["v8", "v2"], ["v8"]))
        A(valu("v_lshlrev_b32 v8, 4, v8", ["v8"], ["v8"]))
        A(valu("v_lshl_add_u32 v%d, v2, 9, v8" % (V_KA + cc), ["v2", "v8"], ["v%d" % (V_KA + cc)]))
    A(valu("v_lshrrev_b32 v8, 2, v2", ["v2"], ["v8"]))
    A(valu("v_lshl_add_u32 v8, v3, 2, v8", ["v3", "v8"], ["v8"]))
    A(valu("v_and_b32 v9, 7, v8", ["v8"], ["v9"]))
    A(valu("v_and_b32 v10, 3, v2", ["v2"], ["v10"]))
    A(valu("v_lshrrev_b32 v11, 1, v10", ["v10"], ["v11"]))
    A(valu("v_and_b32 v10, 1, v10", ["v10"], ["v10"]))
    A(valu("v_lshlrev_b32 v10, 3, v10", ["v10"], ["v10"]))
    A(valu("v_lshl_add_u32 v10, v8, 9, v10", ["v8", "v10"], ["v10"]))
    A(valu("v_add_u32 v10, %d, v10" % LDS_V, ["v10"], ["v10"]))
    for dd in range(8):
        A(valu("v_xor_b32 v12, %d, v9" % dd, ["v9"], ["v12"]))
        A(valu("v_lshl_add_u32 v12, v12, 1, v11", ["v12", "v11"], ["v12"]))
        A(valu("v_lshl_add_u32 v%d, v12, 4, v10" % (V_VA + dd), ["v12", "v10"], ["v%d" % (V_VA + dd)]))
    A(valu("v_xor_b32 v5, 16, v1", ["v1"], ["v5"]))
    A(valu("v_lshlrev_b32 v5, 2, v5", ["v5"], ["v5"]))
    A(valu("v_xor_b32 v6, 32, v1", ["v1"], ["v6"]))
    A(valu("v_lshlrev_b32 v6, 2, v6", ["v6"], ["v6"]))
    for i in range(4):
        A(valu("v_mov_b32 v%d, 0x3f803f80" % (V_ONES + i), [], ["v%d" % (V_ONES + i)]))

    em.raw("s_mov_b32 s%d, s%d" % (S_KOFF, S_WB), "salu")
    em.raw("s_mov_b32 s%d, s%d" % (S_VOFF, S_WB), "salu")
    A(dma_tile(False, 0))
    em.raw("s_mul_i32 s38, s37, 192", "salu")
    em.raw("s_mul_i32 s39, s%d, 48" % S_W, "salu")
    em.raw("s_add_u32 s38, s38, s39", "salu")
    em.raw("s_lshl_b32 s38, s38, 9", "salu")
    A(valu("v_lshlrev_b32 v8, 4, v3", ["v3"], ["v8"]))
    A(valu("v_lshl_add_u32 v8, v2, 9, v8", ["v2", "v8"], ["v8"]))
    A(valu("v_add_u32 v9, 8192, v8", ["v8"], ["v9"]))
    A(valu("v_add_u32 v10, 16384, v8", ["v8"], ["v10"]))
    for b in range(3):
        for c in range(8):
            q = V_Q + (b * 8 + c) * 4
            A(Inst("buffer_load_dwordx4 %s, v%d, s[%d:%d], s38 offen offset:%d" % (vq(q), 8 + b, S_Q, S_Q + 3, c * 64),
                   "vmem", ["v%d" % (8 + b), "s38"], R("v", q, 4)))
    for (isv, slot) in ((False, 1), (True, 0), (False, 2), (True, 1), (False, 3), (True, 2)):
        A(dma_tile(isv, slot))
    for i in range(192):
        A(valu("v_accvgpr_write_b32 a%d, 0" % i, [], ["a%d" % i]))
    for b in range(3):
        A(valu("v_mov_b32 v%d, 0" % (V_L + b), [], ["v%d" % (V_L + b)]))
    em.raw("s_waitcnt vmcnt(24)", "wait")
    em.raw("s_barrier", "barrier")
    stamp(em, 1)
    for f in range(4):
        A(k_read(f, 0))
    for i, m in enumerate(qk_anchors(0)):
        A(m)
        if i % 3 == 0 and i // 3 + 4 < 16:
            A(k_read(i // 3 + 4, 0))
    tile_max(em, 0, True)
    for b in range(3):
        A(valu("v_mov_b32 v%d, v%d" % (V_M + b, V_X + b), ["v%d" % (V_X + b)], ["v%d" % (V_M + b)]))
    for ins in exp_chain(0, PART_A, V_E):
        A(ins)
    em.raw("s_waitcnt vmcnt(16)", "wait")
    em.raw("s_barrier", "barrier")
    A(dma_tile(False, 0))
    for f in range(PDK):
        A(k_read(f, 1))

    em.raw("s_getpc_b64 s[%d:%d]" % (S_RA, S_RA + 1), "salu")
    em.label("L_pc0")
    em.raw("s_add_u32 s%d, s%d, L_rare0-L_pc0" % (S_RA, S_RA), "salu")
    em.raw("s_addc_u32 s%d, s%d, 0" % (S_RA + 1, S_RA + 1), "salu")
    em.raw("s_getpc_b64 s[%d:%d]" % (S_RA + 2, S_RA + 3), "salu")
    em.label("L_pc1")
    em.raw("s_add_u32 s%d, s%d, L_rare1-L_pc1" % (S_RA + 2, S_RA + 2), "salu")
    em.raw("s_addc_u32 s%d, s%d, 0" % (S_RA + 3, S_RA + 3), "salu")
    em.raw("s_mov_b32 s%d, 0" % S_CNT, "salu")

    def body(t, last, dma_k, dma_v, vm_wait):
        p = t & 1
        sK, sV = (t + 1) & 3, t & 3
        anchors = [] if last else qk_anchors(p ^ 1)
        rd = []
        if not last:
            for f in range(PDK, 16):
                rd.append((3 * (f - PDK), k_read(f, sK)))
        n1 = len(anchors)
        vta = []
        for f in range(PDV):
            for x in v_reads(f, sV):
                vta.append((max(0, n1 - 12), x))
        soft = [(0, x) for x in exp_chain(p, PART_B, V_E2)]
        soft += [(0, x) for x in cvt_list(p, PART_A, V_E)]
        soft += [(0, x) for x in cvt_list(p, PART_B, V_E2)]
        if os.environ.get("NOSOFT"):
            soft = soft[-1:]
        if last:
            seq = [x for _, x in soft] + ones_mfmas(p) + [x for _, x in vta]
        else:
            pos = 36
            anchors = anchors[:pos] + ones_mfmas(p) + anchors[pos:]
            seq = merge(anchors, [rd, soft, vta])
            softset = set(id(x) for _, x in soft)
            lastsoft = max(i for i, x in enumerate(seq) if id(x) in softset)
            firstones = min(i for i, x in enumerate(seq) if x.kind == 'mfma' and ('v%d' % V_ONES) in x.rd)
            assert lastsoft < firstones, (lastsoft, firstones)
        for x in seq:
            A(x)
        A(valu("v_max3_f32 v%d, v%d, v%d, v%d" % (V_X, V_LS, V_LS + 4, V_LS + 8), ["v%d" % V_LS, "v%d" % (V_LS + 4), "v%d" % (V_LS + 8)], ["v%d" % V_X]))
        A(valu("v_cmp_nle_f32 vcc, v%d, s%d" % (V_X, S_THR), ["v%d" % V_X, "s%d" % S_THR], ["vcc"]))
        lbl = "L_ok_%d" % body.count
        body.count += 1
        em.raw("s_cbranch_vccz %s" % lbl, "salu")
        em.raw("s_swappc_b64 s[%d:%d], s[%d:%d]" % (S_RET, S_RET + 1, S_RA + 2 * p, S_RA + 2 * p + 1), "salu")
        em.label(lbl)
        for b in range(3):
            A(valu("v_add_f32 v%d, v%d, v%d" % (V_L + b, V_L + b, V_LS + 4 * b), ["v%d" % (V_L + b), "v%d" % (V_LS + 4 * b)], ["v%d" % (V_L + b)]))
        if not os.environ.get("NOBAR"):
            em.raw("s_waitcnt vmcnt(%d)" % vm_wait, "wait")
            em.raw("s_barrier", "barrier")
        anchors = pv_anchors(p)
        rd = []
        for f in range(PDV, 16):
            for x in v_reads(f, sV):
                rd.append((3 * (f - PDV), x))
        kta = []
        if not last:
            for f in range(PDK):
                kta.append((36, k_read(f, (t + 2) & 3)))
        dm = []
        if os.environ.get("NODMA"):
            dma_k = dma_v = False
        if dma_k:
            dm += [(0, x) for x in dma_tile(False, (t + 5) & 3)]
        if dma_v:
            dm += [(0, x) for x in dma_tile(True, (t + 3) & 3)]
        soft = [] if last else [(1, x) for x in exp_chain(p ^ 1, PART_A, V_E)]
        if os.environ.get("NOSOFT"):
            soft = []
        for x in merge(anchors, [rd, soft, dm, kta]):
            A(x)

    body.count = 0
    q0 = [set(x) for x in em.lds_q]
    stamp(em, 2)
    em.label("L_loop")
    for t in range(4):
        body(t, False, True, True, 8)
    q1 = [set(x) for x in em.lds_q]
    assert q0 == q1, (q0, q1)
    em.raw("s_add_u32 s%d, s%d, 1" % (S_CNT, S_CNT), "salu")
    em.raw("s_cmp_lt_u32 s%d, 7" % S_CNT, "salu")
    em.raw("s_cbranch_scc1 L_loop", "salu")
    body(28, False, False, True, 8)
    body(29, False, False, False, 4)
    body(30, False, False, False, 0)
    body(31, True, False, False, 0)

    em.flush_lds()
    stamp(em, 3)

    if os.environ.get("DBG"):
        em.raw("s_load_dwordx2 s[48:49], s[0:1], 40", "salu")
        em.raw("s_waitcnt lgkmcnt(0)", "wait")
        em.raw("s_and_b32 s49, s49, 0xffff", "salu")
        em.raw("s_mov_b32 s50, 4194304", "salu")
        em.raw("s_mov_b32 s51, 0x00020000", "salu")
        em.raw("s_lshl_b32 s52, s2, 2", "salu")
        em.raw("s_add_u32 s52, s52, s%d" % S_W, "salu")
        em.raw("s_mul_i32 s52, s52, 1536", "salu")
        A(valu("v_lshlrev_b32 v2, 2, v1", ["v1"], ["v2"]))
        for b in range(3):
            A(Inst("buffer_store_dword v%d, v2, s[48:51], s52 offen offset:%d" % (V_L + b, b * 256), "vmem", ["v%d" % (V_L + b), "v2"], []))
            A(Inst("buffer_store_dword v%d, v2, s[48:51], s52 offen offset:%d" % (V_M + b, 768 + b * 256), "vmem", ["v%d" % (V_M + b), "v2"], []))
    for b in range(3):
        A(valu("v_rcp_f32 v%d, v%d" % (V_X + b, V_L + b), ["v%d" % (V_L + b)], ["v%d" % (V_X + b)], trans=True))
    em.raw("s_barrier", "barrier")
    A(valu("v_and_b32 v2, 15, v1", ["v1"], ["v2"]))
    A(valu("v_lshrrev_b32 v3, 4, v1", ["v1"], ["v3"]))
    A(valu("v_lshrrev_b32 v4, 5, v1", ["v1"], ["v4"]))
    A(valu("v_and_b32 v7, 31, v1", ["v1"], ["v7"]))
    em.raw("s_mul_i32 s39, s%d, 24576" % S_W, "salu")
    A(valu("v_lshrrev_b32 v8, 1, v3", ["v3"], ["v8"]))
    A(valu("v_and_b32 v9, 1, v3", ["v3"], ["v9"]))
    A(valu("v_lshlrev_b32 v9, 3, v9", ["v9"], ["v9"]))
    A(valu("v_lshl_add_u32 v9, v2, 9, v9", ["v2", "v9"], ["v9"]))
    A(valu("v_add_u32 v9, s39, v9", ["v9", "s39"], ["v9"]))
    for dd in range(8):
        A(valu("v_add_u32 v10, %d, v8" % (dd * 2), ["v8"], ["v10"]))
        A(valu("v_xor_b32 v10, v10, v2", ["v10", "v2"], ["v10"]))
        A(valu("v_lshl_add_u32 v%d, v10, 4, v9" % (V_VA + dd), ["v10", "v9"], ["v%d" % (V_VA + dd)]))
    for jj in range(8):
        A(valu("v_add_u32 v10, %d, v4" % (2 * jj), ["v4"], ["v10"]))
        A(valu("v_xor_b32 v10, v10, v7", ["v10", "v7"], ["v10"]))
        A(valu("v_lshlrev_b32 v10, 4, v10", ["v10"], ["v10"]))
        A(valu("v_lshl_add_u32 v10, v4, 9, v10", ["v4", "v10"], ["v10"]))
        A(valu("v_add_u32 v10, %d, v10" % (jj * 1024), ["v10"], ["v10"]))
        A(valu("v_add_u32 v%d, s39, v10" % (V_KA_E + jj), ["v10", "s39"], ["v%d" % (V_KA_E + jj)]))
    A(valu("v_lshlrev_b32 v11, 4, v7", ["v7"], ["v11"]))
    A(valu("v_lshl_add_u32 v11, v4, 9, v11", ["v4", "v11"], ["v11"]))
    k = 0
    for b in range(3):
        for d in range(16):
            base = 16 + (k % 8) * 6
            k += 1
            for r in range(4):
                A(valu("v_accvgpr_read_b32 v%d, a%d" % (base + r, A_O + (b * 16 + d) * 4 + r), ["a%d" % (A_O + (b * 16 + d) * 4 + r)], ["v%d" % (base + r)]))
            for r in range(4):
                A(valu("v_mul_f32 v%d, v%d, v%d" % (base + r, base + r, V_X + b), ["v%d" % (base + r), "v%d" % (V_X + b)], ["v%d" % (base + r)]))
            A(v_cvtpk(base + 4, base, base + 1))
            A(v_cvtpk(base + 5, base + 2, base + 3))
            em.out.append(Inst("ds_write_b64 v%d, v[%d:%d] offset:%d" % (V_VA + (d & 7), base + 4, base + 5, b * 8192 + (d >> 3) * 256),
                               "dsw", ["v%d" % (V_VA + (d & 7)), "v%d" % (base + 4), "v%d" % (base + 5)], []))
    em.raw("s_waitcnt lgkmcnt(0)", "wait")
    em.raw("s_mov_b32 s39, s38", "salu")
    for j in range(24):
        dst = 112 + (j % 12) * 4
        A(Inst("ds_read_b128 %s, v%d offset:%d" % (vq(dst), V_KA_E + (j & 7), (j >> 3) * 8192), "ds",
               ["v%d" % (V_KA_E + (j & 7))], R("v", dst, 4)))
        if j >= 4 or j == 23:
            pass
        if j % 12 == 11:
            for i in range(j - 11, j + 1):
                d2 = 112 + (i % 12) * 4
                A(Inst("buffer_store_dwordx4 %s, v11, s[%d:%d], s39 offen" % (vq(d2), S_O, S_O + 3), "vmem",
                       ["v11", "s39"] + R("v", d2, 4), []))
                em.raw("s_add_u32 s39, s39, 1024", "salu")
            em.raw("s_waitcnt vmcnt(0)", "wait")
    stamp(em, 4)
    if os.environ.get("TIME"):
        em.raw("s_load_dwordx2 s[48:49], s[0:1], 40", "salu")
        em.raw("s_waitcnt lgkmcnt(0)", "wait")
        em.raw("s_and_b32 s49, s49, 0xffff", "salu")
        em.raw("s_mov_b32 s50, 4194304", "salu")
        em.raw("s_mov_b32 s51, 0x00020000", "salu")
        em.raw("s_lshl_b32 s52, s2, 2", "salu")
        em.raw("s_add_u32 s52, s52, s%d" % S_W, "salu")
        em.raw("s_lshl_b32 s52, s52, 6", "salu")
        em.raw("s_add_u32 s52, s52, 2097152", "salu")
        for i in range(14):
            A(valu("v_mov_b32 v%d, s%d" % (20 + i, 60 + i), [], ["v%d" % (20 + i)]))
        A(valu("v_mov_b32 v2, 0", [], ["v2"]))
        for i in range(14):
            A(Inst("buffer_store_dword v%d, v2, s[48:51], s52 offen offset:%d" % (20 + i, i * 4), "vmem", ["v%d" % (20 + i), "v2"], []))
    em.label("L_end")
    em.raw("s_endpgm")

    for p in range(2):
        em.label("L_rare%d" % p)
        em.raw("s_nop 7")
        em.raw("s_nop 7")
        tile_max(em, p, False)
        for b in range(3):
            x, f = V_X + b, V_T0 + b
            A(valu("v_max_f32 v%d, v%d, v%d" % (x, x, V_M + b), ["v%d" % x, "v%d" % (V_M + b)], ["v%d" % x]))
            A(valu("v_sub_f32 v%d, v%d, v%d" % (f, V_M + b, x), ["v%d" % (V_M + b), "v%d" % x], ["v%d" % f]))
            A(v_exp(f, f))
            A(valu("v_mov_b32 v%d, v%d" % (V_M + b, x), ["v%d" % x], ["v%d" % (V_M + b)]))
            A(valu("v_mul_f32 v%d, v%d, v%d" % (V_L + b, V_L + b, f), ["v%d" % (V_L + b), "v%d" % f], ["v%d" % (V_L + b)]))
            for i in range(64):
                a = A_O + b * 64 + i
                t = V_T0 + 6 + (i % 8)
                A(valu("v_accvgpr_read_b32 v%d, a%d" % (t, a), ["a%d" % a], ["v%d" % t]))
                A(valu("v_mul_f32 v%d, v%d, v%d" % (t, t, f), ["v%d" % t, "v%d" % f], ["v%d" % t]))
                A(valu("v_accvgpr_write_b32 a%d, v%d" % (a, t), ["v%d" % t], ["a%d" % a]))
        for ins in exp_chain(p, PART_A, V_E):
            A(ins)
        for ins in exp_chain(p, PART_B, V_E2):
            A(ins)
        for ins in cvt_list(p, PART_A, V_E) + cvt_list(p, PART_B, V_E2):
            A(ins)
        for m in ones_mfmas(p):
            A(m)
        em.raw("s_nop 7")
        em.raw("s_nop 7")
        em.raw("s_setpc_b64 s[%d:%d]" % (S_RET, S_RET + 1), "salu")

    return em.out, stats


def float_bits(x):
    import struct
    return struct.unpack("<I", struct.pack("<f", x))[0]


HEADER = """; Kernarg layout for this problem (48 bytes, ptrs only, base s[0:1]):
;   offset  40: d_ws      268435456 bytes workspace (unspecified values whenever your kernel or launch list starts; a list's later launches find what earlier ones wrote)
; grid=ceil(out_elems/256), lds=0). Harness parses it; keep it on one line.
; @launch grid=(256,1,1) block=(256,1,1) lds=131072
.amdgcn_target "amdgcn-amd-amdhsa--gfx950"
.text
.globl {n}_kernel
.p2align 8
.type {n}_kernel,@function
{n}_kernel:
"""

FOOTER = """.section .rodata,"a"
.p2align 6
.amdhsa_kernel {n}_kernel
  .amdhsa_next_free_vgpr 512
  .amdhsa_next_free_sgpr 102
  .amdhsa_accum_offset 256
  .amdhsa_group_segment_fixed_size 0
  .amdhsa_kernarg_size 48
  .amdhsa_user_sgpr_count 2
  .amdhsa_user_sgpr_kernarg_segment_ptr 1
  .amdhsa_system_sgpr_workgroup_id_x 1
.end_amdhsa_kernel
"""


def main():
    out, stats = gen()
    out = fix_hazards(out, stats)
    txt = HEADER.format(n=NAME)
    for ins in out:
        if ins.kind == "label":
            txt += ins.text + "\n"
        else:
            txt += "    " + ins.text + "\n"
    txt += FOOTER.format(n=NAME)
    path = sys.argv[1] if len(sys.argv) > 1 else "cdna_kernels/%s.s" % NAME
    open(path, "w").write(txt)
    print("wrote", path, "insts:", len(out), stats)


if __name__ == "__main__":
    main()
```
